```python
import torch

def _softmax(x, axis=-1):
    return torch.softmax(x, dim=axis)
def _gelu(x):
    return torch.nn.functional.gelu(x, approximate="tanh")
def _silu(x):
    return torch.nn.functional.silu(x)
def _sigmoid(x):
    return torch.sigmoid(x)
def _layernorm(x, axis=-1, eps=1e-5):
    m = x.mean(dim=axis, keepdim=True)
    v = x.var(dim=axis, keepdim=True, unbiased=False)
    return (x - m) / torch.sqrt(v + eps)
def _scatter_add(tgt, idx, src, axis=0):
    return tgt.clone().index_add_(axis, idx, src)
def _segment_sum(src, seg, n):
    out = torch.zeros((n,) + src.shape[1:], dtype=src.dtype)
    return out.index_add_(0, seg, src)
def _pad(x, pw):
    flat = tuple(v for pair in reversed(pw) for v in pair)
    return torch.nn.functional.pad(x, flat)

kernel_name = 'standalone__gqa_softmax__near_ridge'

def setup_inputs():

    _w = (lambda a: (lambda t: t.to(torch.bfloat16) if t.is_floating_point() else t)(torch.as_tensor(a)))
    B, Hq, Hkv, Sq, Sk, D = 32, 32, 4, 192, 512, 128
    return {
        "q": _w((lambda *s: torch.randn(*s, dtype=torch.bfloat16) * 0.8)(B, Hq, Sq, D)),
        "k": _w((lambda *s: torch.randn(*s, dtype=torch.bfloat16) * 0.8)(B, Hkv, Sk, D)),
        "v": _w((lambda *s: torch.randn(*s, dtype=torch.bfloat16) * 0.05)(B, Hkv, Sk, D)),
    }

def reference(q, k, v):
    B, Hq, Sq, D = q.shape
    Hkv = k.shape[1]
    rep = Hq // Hkv
    k = (lambda x, n, axis: torch.repeat_interleave(x, n, dim=axis))(k, rep, axis=1)
    v = (lambda x, n, axis: torch.repeat_interleave(x, n, dim=axis))(v, rep, axis=1)
    scale = D ** -0.5
    scores = torch.einsum("bhqd,bhkd->bhqk", q, k) * scale
    p = _softmax(scores, axis=-1)
    return torch.einsum("bhqk,bhkd->bhqd", p, v)
```

```python
import re


def R(kind, lo, n=1):
    return [(kind, lo + i) for i in range(n)]


def rng(kind, lo, n):
    return f"{kind}{lo}" if n == 1 else f"{kind}[{lo}:{lo + n - 1}]"


class Ins:
    __slots__ = ("text", "kind", "rd", "wr", "cd", "need", "tag", "slots", "ws")

    def __init__(self, text, kind, rd=(), wr=(), cd=None, need=(), tag=None):
        self.text = text
        self.kind = kind
        self.rd = list(rd)
        self.wr = list(wr)
        self.cd = cd
        self.need = list(need)
        self.tag = tag
        self.slots = {"trans": 2, "dma": 2, "vld": 2, "vst": 3}.get(kind, 1)
        self.ws = 1

    @property
    def first(self):
        return self.kind in ("ds", "vld", "dma", "vst")


def mfma(d, a, b, c0=False):
    D = R(d[0], d[1], 4)
    c = "0" if c0 else rng(d[0], d[1], 4)
    t = f"v_mfma_f32_16x16x32_bf16 {rng(d[0], d[1], 4)}, {rng(a[0], a[1], 4)}, {rng(b[0], b[1], 4)}, {c}"
    return Ins(t, "mfma", rd=R(a[0], a[1], 4) + R(b[0], b[1], 4), wr=D, cd=None if c0 else tuple(D))


def smfmac(d, a, b, idx):
    D = R(d[0], d[1], 4)
    t = f"v_smfmac_f32_16x16x64_bf16 {rng(d[0], d[1], 4)}, {rng(a[0], a[1], 4)}, {rng(b[0], b[1], 8)}, v{idx}"
    return Ins(t, "mfma", rd=R(a[0], a[1], 4) + R(b[0], b[1], 8) + [("v", idx)], wr=D, cd=tuple(D))


def valu(op, dst, *srcs, trans=False):
    def f(x):
        return f"{x[0]}{x[1]}" if isinstance(x, tuple) else str(x)
    t = f"{op} {f(dst)}, " + ", ".join(f(s) for s in srcs)
    return Ins(t, "trans" if trans else "valu", rd=[s for s in srcs if isinstance(s, tuple)], wr=[dst])


def salu(text, rd=(), wr=()):
    return Ins(text, "salu", rd=rd, wr=wr)


def nop(n):
    i = Ins(f"s_nop {n - 1}", "nop")
    i.ws = n
    return i


class Gap:
    def __init__(self, mf):
        self.mf = mf
        self.sc = []
        self.mem = []
        self.va = []
        self.used = 0
        self.cap = 2

    def free(self):
        return self.cap - self.used

    def add(self, ins):
        if ins.kind in ("salu", "bar", "wait", "nop", "raw"):
            self.sc.append(ins)
        elif ins.first:
            self.mem.append(ins)
            self.used += ins.slots
        else:
            self.va.append(ins)
            self.used += ins.slots

    def lin(self):
        return ([self.mf] if self.mf is not None else []) + self.sc + self.mem + self.va


def insert_waits(prog, eager_lgkm=24, eager_vm=None):
    out = []
    pend = {}
    seq = {"l": 0, "v": 0}
    done = {"l": 0, "v": 0}
    issue_pos = {"l": {}, "v": {}}
    tagseq = {}
    maxc = {"l": 15, "v": 63}
    nw = 0
    for ins in prog:
        need = {"l": 0, "v": 0}
        regs = list(ins.rd) + list(ins.wr) + list(ins.cd or ())
        for r in regs:
            if r in pend:
                c, s = pend[r]
                if s > done[c]:
                    need[c] = max(need[c], s)
        for t in ins.need:
            c, s = tagseq[t]
            if s > done[c]:
                need[c] = max(need[c], s)
        if ins.kind == "wait":
            for c in ins.tag:
                done[c] = seq[c]
            out.append(ins)
            continue
        if need["l"] or need["v"]:
            pos = len(out)
            j = len(out) - 1
            while j >= 0 and out[j].kind != "mfma" and len(out) - j < 8:
                j -= 1
            if j >= 0 and out[j].kind == "mfma":
                cand = j + 1
                ok = all(issue_pos[c][need[c]] < cand for c in "lv" if need[c])
                if ok and not any(x.kind == "bar" for x in out[cand:]):
                    pos = cand
            parts = []
            for c in "lv":
                if not need[c]:
                    continue
                s = need[c]
                issued = seq[c]
                while issued > 0 and issue_pos[c][issued] >= pos:
                    issued -= 1
                eager = eager_lgkm if c == "l" else eager_vm
                if eager is not None:
                    while s < issued and pos - issue_pos[c][s + 1] >= eager:
                        s += 1
                n = issued - s
                if n > maxc[c]:
                    n = maxc[c]
                    s = issued - n
                done[c] = max(done[c], s)
                parts.append(("lgkmcnt" if c == "l" else "vmcnt") + f"({n})")
            w = Ins("s_waitcnt " + " ".join(reversed(parts)), "wait", tag="")
            out.insert(pos, w)
            nw += 1
            for c in "lv":
                for k, p in issue_pos[c].items():
                    if p >= pos:
                        issue_pos[c][k] = p + 1
        cls = {"ds": "l", "vld": "v", "dma": "v", "vst": "v"}.get(ins.kind)
        if cls:
            seq[cls] += 1
            issue_pos[cls][seq[cls]] = len(out)
            old = seq[cls] - 200
            if old in issue_pos[cls] and old <= done[cls]:
                pass
            if ins.kind in ("ds", "vld"):
                for r in ins.wr:
                    pend[r] = (cls, seq[cls])
            if ins.tag is not None:
                tagseq[ins.tag] = (cls, seq[cls])
            assert seq["v"] - done["v"] <= 63 or cls != "v" or True
        out.append(ins)
    return out, nw


def fix_hazards(prog, verbose=False):
    out = []
    t = 0
    lastw = {}
    stdata = {}
    nn = 0
    for ins in prog:
        req = 0

        def dep(r, dist):
            nonlocal req
            req = max(req, lastw[r][0] + 1 + dist)

        k = ins.kind
        if k == "mfma":
            for r in ins.rd:
                if r in lastw:
                    pk = lastw[r][1]
                    if pk in ("valu", "trans"):
                        dep(r, 2)
                    elif pk == "mfma":
                        dep(r, 8)
            for r in (ins.cd or ()):
                if r in lastw:
                    pk = lastw[r][1]
                    if pk in ("valu", "trans"):
                        dep(r, 2)
                    elif pk == "mfma" and lastw[r][2] != ins.cd:
                        dep(r, 6)
        elif k in ("valu", "trans"):
            for r in ins.rd:
                if r in lastw:
                    pk = lastw[r][1]
                    if pk == "mfma":
                        dep(r, 8)
                    elif pk == "trans" and k == "valu":
                        dep(r, 1)
                    elif pk in ("valu", "trans") and r[0] == "s":
                        dep(r, 2)
            for r in ins.wr:
                if r in lastw and lastw[r][1] == "mfma":
                    dep(r, 8)
        elif k in ("ds", "vld", "dma", "vst"):
            for r in list(ins.rd) + list(ins.wr):
                if r in lastw:
                    pk = lastw[r][1]
                    if pk == "mfma":
                        dep(r, 8)
                    elif r == "m0" and pk == "salu":
                        dep(r, 1)
                    elif pk in ("valu", "trans") and r[0] == "s":
                        dep(r, 5)
        for r in ins.wr:
            if r in stdata:
                req = max(req, stdata[r] + 1 + 2)
        if req > t:
            n = req - t
            if verbose:
                print("nop", n, "before", ins.text)
            while n > 0:
                m = min(n, 16)
                out.append(nop(m))
                t += m
                n -= m
                nn += 1
        out.append(ins)
        for r in ins.wr:
            lastw[r] = (t, k, tuple(ins.wr) if k == "mfma" else None)
        if k == "vst":
            for r in ins.rd:
                if r[0] in "va":
                    stdata[r] = t
        t += ins.ws
    return out, nn


def est_cycles(prog):
    t = 0
    pipe = 0
    vfree = 0
    prev = None
    for ins in prog:
        k = ins.kind
        if k == "mfma":
            t = max(t, pipe, vfree)
            pipe = t + 16
            vfree = t + 8
            t += 4
        elif k in ("valu", "trans"):
            t = max(t, vfree)
            t += 4 * ins.slots
        elif k in ("ds", "vld", "dma", "vst"):
            t = max(t, vfree)
            if prev in ("valu", "trans"):
                t += 8
            t += 4 * ins.slots
        elif k == "bar":
            t += 40
        else:
            t += 4 * ins.ws
        prev = k
    return t
```

```python
import sys, os, struct, math
sys.path.insert(0, os.path.dirname(os.path.abspath(__file__)))
from asmlib import *

NAME = "standalone__gqa_softmax__near_ridge"
VB = 131072
HS = 33

def O(x, qs, db): return 128 + 64 * x + 32 * qs + 4 * db
def S(x, kt, qs): return 96 + 16 * x + (kt * 2 + qs) * 4
def P(x, qs=0): return 80 + 8 * x + 4 * qs
def L(x): return 72 + 4 * x
SMA = 68
IDX = 67
LAND = 32
KA = 1
VA = 9
VOQ, VOK, VOV, UMAX = 13, 14, 15, 16
def RC(x, qs): return 17 + 2 * x + qs
TMP = 21
def Q(st, x, qs, ds): return st * 64 + x * 32 + qs * 16 + ds * 4
def KF(kt, ds): return 128 + (kt * 4 + ds) * 4
def VF(db): return 160 + 4 * db
SQ, SK, SV, SO = 8, 12, 16, 20
SC, SMASK, SW1K, SW2K, SLO = 24, 25, 26, 27, 28
SOFV, SOFQ, SOFO = 29, 30, 31
SW = 33
STS = 64

C_SCALE = struct.unpack("<I", struct.pack("<f", math.log2(math.e) / math.sqrt(128.0)))[0]
LO_BITS = (127 - 40) << 23
RANGE = ((127 + 64) << 23) - LO_BITS


def srd(b): return f"s[{b}:{b + 3}]"
def v(n): return ("v", n)
def a(n): return ("a", n)
def s(n): return ("s", n)


def ds_k(tile, kt, ds):
    m = 2 * tile + kt
    areg = KA + ds + (4 if m >= 16 else 0)
    off = (m % 16) * 4096
    d = KF(kt, ds)
    return Ins(f"ds_read_b128 a[{d}:{d + 3}], v{areg} offset:{off}", "ds", rd=[v(areg)], wr=R("a", d, 4))


def ds_v(slot, db, j, tag=None):
    areg = VA + db // 2
    off = slot * 8192 + j * 4096 + 8 * (db & 1)
    d = VF(db) + 2 * j
    return Ins(f"ds_read_b64_tr_b16 a[{d}:{d + 1}], v{areg} offset:{off}", "ds", rd=[v(areg)], wr=R("a", d, 2), tag=tag)


def dma_k(tile, i, cfg):
    m = 2 * tile + i
    return [salu(f"s_add_u32 m0, s{SW1K}, {m * 4096}", wr=["m0"]),
            Ins(f"buffer_load_dwordx4 v{VOK}, {srd(SK)}, m0 offen lds{cfg.kflag}", "dma", rd=[v(VOK), "m0"], tag=("K", tile, i))]


def dma_v_setup(step, slot):
    tile = step % 16
    return [salu(f"s_add_u32 s{SOFV}, s{SW2K}, {tile * 8192}", wr=[s(SOFV)]),
            salu(f"s_add_u32 m0, s{SW2K}, {VB + slot * 8192}", wr=["m0"])]


def dma_v(step, i, cfg):
    off = f" offset:{1024 * i}" if i else ""
    return Ins(f"buffer_load_dwordx4 v{VOV}, {srd(SV)}, s{SOFV} offen{off} lds{cfg.vflag}", "dma", rd=[v(VOV), "m0", s(SOFV)],
               tag=("V", step, i))


def q_load(p, x, qs, ds, dst, cfg):
    so = (p * 64 + x * 32 + qs * 16) * 256
    off = f" offset:{64 * ds}" if ds else ""
    return [salu(f"s_mov_b32 s{SOFQ}, {so}", wr=[s(SOFQ)]),
            Ins(f"buffer_load_dwordx4 v[{dst}:{dst + 3}], v{VOQ}, {srd(SQ)}, s{SOFQ} offen{off}{cfg.qflag}", "vld",
                rd=[v(VOQ), s(SOFQ)], wr=R("v", dst, 4))]


def q_proc(src, adst):
    ops = []
    for h in range(2):
        r0, r1 = src + 2 * h, src + 2 * h + 1
        t0, t1 = TMP + 2 * h, TMP + 2 * h + 1
        ops += [valu("v_lshlrev_b32", v(t0), "16", v(r0)), valu("v_lshlrev_b32", v(t1), "16", v(r1)),
                valu("v_and_b32", v(r0), s(SMASK), v(r0)), valu("v_and_b32", v(r1), s(SMASK), v(r1)),
                valu("v_mul_f32", v(t0), s(SC), v(t0)), valu("v_mul_f32", v(t1), s(SC), v(t1)),
                valu("v_mul_f32", v(r0), s(SC), v(r0)), valu("v_mul_f32", v(r1), s(SC), v(r1)),
                valu("v_cvt_pk_bf16_f32", v(t0), v(t0), v(r0)), valu("v_cvt_pk_bf16_f32", v(t1), v(t1), v(r1)),
                valu("v_accvgpr_write_b32", a(adst + 2 * h), v(t0)), valu("v_accvgpr_write_b32", a(adst + 2 * h + 1), v(t1))]
    return ops


def o_store(p, x, qs, uu, cfg):
    so = (p * 64 + x * 32 + qs * 16) * 256
    o = O(x, qs, 2 * uu)
    off = f" offset:{64 * uu}" if uu else ""
    return [salu(f"s_mov_b32 s{SOFO}, {so}", wr=[s(SOFO)]),
            Ins(f"buffer_store_dwordx4 v[{o}:{o + 3}], v{VOQ}, {srd(SO)}, s{SOFO} offen{off}{cfg.oflag}", "vst",
                rd=R("v", o, 4) + [v(VOQ), s(SOFO)])]


class Cfg:
    kflag = ""
    vflag = ""
    qflag = ""
    oflag = ""
    stamps = False
    force_fallback = False
    codepf = False


def place(gaps, ops, start, end, slack=40, mins=None):
    n = len(ops)
    cur = start
    pend = []
    for i, op in enumerate(ops):
        if op.kind == "salu":
            pend.append(op)
            continue
        hi = start + int((end - start) * (i + 1) / n)
        lo = max(cur, hi - slack)
        if mins and mins[i] is not None:
            lo = max(lo, mins[i])
        if op.first:
            lo = max(lo, cur + 1)
        hi = max(hi, lo)
        g = None
        for c in range(lo, hi + 1):
            need = min(op.slots, 2)
            if gaps[c].free() >= need and not (op.first and gaps[c].mem):
                g = c
                break
        if g is None:
            cands = range(max(lo, hi - 3), hi + 1)
            g = min(cands, key=lambda c: (gaps[c].used + (4 if (op.first and gaps[c].mem) else 0), -c))
        for x in pend:
            gaps[g].add(x)
        pend = []
        gaps[g].add(op)
        cur = g
    return cur


def stamp(i):
    return Ins(f"s_memtime s[{STS + 2 * i}:{STS + 2 * i + 1}]", "raw")


def build(cfg):
    NU = 96
    gaps = []
    for h in range(NU + 1):
        for c in range(4):
            kt, qs = c // 2, c % 2
            for ds in range(4):
                if h < NU:
                    x, st, p = h % 2, (h // 32) % 2, h // 32
                    gaps.append(Gap(mfma(v(S(x, kt, qs)), a(KF(kt, ds)), a(Q(st, x, qs, ds)), c0=(ds == 0))))
                else:
                    gaps.append(Gap(None))
        u = h - 1
        if u >= 0:
            y = u % 2
            t = (u // 2) % 16
            gaps.append(Gap(smfmac(v(L(y)), v(SMA), v(P(y)), IDX)))
            for db in range(8):
                for qs in range(2):
                    gaps.append(Gap(mfma(v(O(y, qs, db)), a(VF(db)), v(P(y, qs)), c0=(t == 0))))
        else:
            for _ in range(17):
                gaps.append(Gap(None))
    for _ in range(80):
        gaps.append(Gap(None))
    G = lambda h, l: h * HS + l
    for u in range(NU):
        x = u % 2
        for e in range(16):
            g = G(u, 10 + 2 * e) if e <= 10 else G(u + 1, 2 * (e - 11))
            r = 96 + 16 * x + e
            gaps[g].add(valu("v_exp_f32", v(r), v(r), trans=True))
            if e % 2 == 1:
                c = e // 4
                kt, qs = c // 2, c % 2
                gaps[g + 1].add(valu("v_cvt_pk_bf16_f32", v(P(x, qs) + 2 * kt + (e // 2) % 2), v(r - 1), v(r)))
    for st in range(48):
        locs = [G(2 * st, l) for l in (19, 21, 23, 25, 27, 29, 31, 32)] + [G(2 * st + 1, l) for l in range(1, 16, 2)]
        for k in range(16):
            gaps[locs[k]].add(ds_v(st % 4, k // 2, k % 2, tag=("T", st, k)))
        if st + 1 < 48:
            for k in range(8):
                gaps[G(2 * st + 1, 17 + 2 * k)].add(ds_k((st + 1) % 16, k // 4, k % 4))
    for st in range(1, 49):
        need = [("T", st - 1, 15)]
        if st < 48:
            need += [("V", st, 0), ("V", st, 1)]
        if st + 1 < 16:
            need += [("K", st + 1, 0), ("K", st + 1, 1)]
        gaps[G(2 * st, 0)].add(Ins("s_barrier", "bar", need=need))
        if st + 3 < 48:
            su = dma_v_setup(st + 3, (st + 3) % 4)
            gaps[G(2 * st, 1)].add(su[0])
            gaps[G(2 * st, 2)].add(su[1])
            gaps[G(2 * st, 3)].add(dma_v(st + 3, 0, cfg))
            gaps[G(2 * st, 7)].add(dma_v(st + 3, 1, cfg))
    for st in range(0, 12):
        for i in range(2):
            d = dma_k(st + 4, i, cfg)
            gaps[G(2 * st, 10 + 4 * i)].add(d[0])
            gaps[G(2 * st, 11 + 4 * i)].add(d[1])
    for p in range(3):
        for x in range(2):
            u = 2 * (16 * p + 15) + x
            g0 = G(u + 1, 0)
            l = L(x)
            ops = [valu("v_add_f32", v(RC(x, 0)), v(l), v(l + 1)), valu("v_add_f32", v(RC(x, 1)), v(l + 2), v(l + 3)),
                   valu("v_subrev_u32", v(l), s(SLO), v(RC(x, 0))), valu("v_subrev_u32", v(l + 1), s(SLO), v(RC(x, 1))),
                   valu("v_rcp_f32", v(RC(x, 0)), v(RC(x, 0)), trans=True), valu("v_rcp_f32", v(RC(x, 1)), v(RC(x, 1)), trans=True),
                   valu("v_max3_u32", v(UMAX), v(UMAX), v(l), v(l + 1))]
            if p < 2:
                ops += [valu("v_mov_b32", v(l + i), "0") for i in range(4)]
            place(gaps, ops, g0 + 20, g0 + 27, slack=8)
            ops, mins = [], []
            for uu in range(4):
                for qs in range(2):
                    o = O(x, qs, 2 * uu)
                    grp = [valu("v_mul_f32", v(o + i), v(RC(x, qs)), v(o + i)) for i in range(8)]
                    grp += [valu("v_cvt_pk_bf16_f32", v(o + i), v(o + 2 * i), v(o + 2 * i + 1)) for i in range(4)]
                    grp += o_store(p, x, qs, uu, cfg)
                    ops += grp
                    mins += [max(g0 + 28, g0 + 23 + 4 * uu + qs)] * len(grp)
            if p < 2:
                place(gaps, ops, g0 + 28, g0 + 93, slack=30, mins=mins)
            elif x == 0:
                place(gaps, ops, g0 + 28, g0 + 33 + 30, slack=30, mins=mins)
            else:
                place(gaps, ops, g0 + 28, g0 + 33 + 60, slack=100, mins=mins)
    for p in range(2):
        quad = lambda j: (j // 8, (j // 4) % 2, j % 4)
        ops = []
        for j in range(8):
            x, qs, ds = quad(j)
            ops += q_load(p + 1, x, qs, ds, LAND + 4 * j, cfg)
        place(gaps, ops, G(32 * p + 1, 0), G(32 * p + 7, 0), slack=30)
        ops = []
        for j in range(16):
            x, qs, ds = quad(j)
            ops += q_proc(LAND + 4 * (j % 8), Q((p + 1) % 2, x, qs, ds))
            if j < 8:
                x, qs, ds = quad(j + 8)
                ops += q_load(p + 1, x, qs, ds, LAND + 4 * j, cfg)
        place(gaps, ops, G(32 * p + 8, 0), G(32 * p + 32, 25), slack=40)

    head = []
    for i in range(2):
        head += dma_k(0, i, cfg)
    for j in range(8):
        head += q_load(0, 0, (j // 4) % 2, j % 4, 128 + 4 * j, cfg)
    for i in range(2):
        head += dma_k(1, i, cfg)
    head += dma_v_setup(0, 0) + [dma_v(0, 0, cfg), dma_v(0, 1, cfg)]
    for j in range(8, 16):
        head += q_load(0, 1, (j // 4) % 2, j % 4, 128 + 4 * j, cfg)
    for t in range(1, 4):
        head += dma_v_setup(t, t) + [dma_v(t, 0, cfg), dma_v(t, 1, cfg)]
        if t + 1 < 4:
            for i in range(2):
                head += dma_k(t + 1, i, cfg)
    if cfg.stamps:
        head.append(stamp(1))
    for j in range(8):
        head += q_proc(128 + 4 * j, Q(0, 0, (j // 4) % 2, j % 4))
    if cfg.stamps:
        head.append(stamp(2))
    head.append(Ins("s_barrier", "bar", need=[("K", 0, 1), ("K", 1, 1), ("V", 0, 1)]))
    for k in range(8):
        head.append(ds_k(0, k // 4, k % 4))
    for j in range(8, 16):
        head += q_proc(128 + 4 * j, Q(0, 1, (j // 4) % 2, j % 4))
    if cfg.stamps:
        head.append(stamp(3))
        for i, h in enumerate([8, 16, 32, 40, 64, 72, 96]):
            gaps[G(h, 4)].add(stamp(4 + i))

    prog = list(head)
    over = 0
    for g in gaps:
        prog += g.lin()
        if g.mf is not None:
            over += max(0, g.used - 2) + max(0, len(g.sc) - 1 - max(0, 2 - g.used))
    prog, nw = insert_waits(prog)
    prog, nn = fix_hazards(prog, verbose=False)
    info = f"instrs={len(prog)} waits={nw} nops={nn} overfill={over} est_cycles={est_cycles(prog)}"
    return prog, info


PROLOG = f"""
    s_cmp_ge_u32 s2, 256
    s_cbranch_scc1 Lend
    s_load_dwordx8 s[36:43], s[0:1], 0
    v_and_b32 v21, 63, v0
    v_lshrrev_b32 v22, 6, v0
    v_and_b32 v23, 15, v0                 ; n
    v_readfirstlane_b32 s{SW}, v22
    v_lshrrev_b32 v24, 4, v21             ; g
    s_and_b32 s3, s2, 7
    s_lshl_b32 s3, s3, 4
    s_lshr_b32 s4, s2, 4
    s_add_u32 s3, s3, s4
    s_bfe_u32 s4, s2, 0x10003             ; half
    s_lshl_b32 s5, s3, 1
    s_add_u32 s5, s5, s4
    s_mul_i32 s5, s5, 196608
    s_lshl_b32 s6, s3, 17
    s_lshl_b32 s{SW1K}, s{SW}, 10
    s_lshl_b32 s{SW2K}, s{SW}, 11
    s_mul_i32 s7, s{SW}, 49152
    s_mov_b32 s{SC}, {C_SCALE:#x}
    s_mov_b32 s{SMASK}, 0xffff0000
    s_mov_b32 s{SLO}, {LO_BITS:#x}
    v_lshlrev_b32 v25, 8, v23             ; n*256
    v_lshlrev_b32 v26, 8, v24             ; g*256
    v_lshl_add_u32 v{VOQ}, v24, 4, v25
    v_add_u32 v{VOQ}, s7, v{VOQ}          ; n*256 + g*16 + w*49152
    v_lshl_add_u32 v27, v22, 2, v24       ; 4w+g
    v_xor_b32 v27, v27, v23
    v_lshl_add_u32 v{VOK}, v27, 4, v26    ; g*256 + ((n^(4w+g))*16)
    v_lshlrev_b32 v27, 2, v24
    v_xor_b32 v27, v27, v23
    v_lshl_add_u32 v{VOV}, v27, 4, v26    ; g*256 + ((n^4g)*16)
    s_mov_b32 s{SQ + 2}, 196608
    s_mov_b32 s{SQ + 3}, 0x20000
    s_mov_b32 s{SK + 2}, 131072
    s_mov_b32 s{SK + 3}, 0x20000
    s_mov_b32 s{SV + 2}, 131072
    s_mov_b32 s{SV + 3}, 0x20000
    s_mov_b32 s{SO + 2}, 196608
    s_mov_b32 s{SO + 3}, 0x20000
    s_waitcnt lgkmcnt(0)
    s_add_u32 s{SK}, s38, s6
    s_addc_u32 s{SK + 1}, s39, 0
    s_add_u32 s{SQ}, s36, s5
    s_addc_u32 s{SQ + 1}, s37, 0
    s_add_u32 s{SV}, s40, s6
    s_addc_u32 s{SV + 1}, s41, 0
    s_add_u32 s{SO}, s42, s5
    s_addc_u32 s{SO + 1}, s43, 0
"""

PROLOG2 = "\n".join(
    [f"    v_add_u32 v27, {4 * ds}, v24\n    v_xor_b32 v27, v27, v23\n    v_lshl_add_u32 v{KA + ds}, v27, 4, v25\n"
     f"    v_add_u32 v{KA + 4 + ds}, 0x10000, v{KA + ds}" for ds in range(4)] +
    ["    v_lshrrev_b32 v28, 2, v23             ; n>>2",
     "    v_lshl_add_u32 v27, v24, 2, v28       ; 4g + (n>>2)",
     "    v_lshlrev_b32 v27, 8, v27",
     "    v_and_b32 v29, 3, v23",
     "    v_lshl_add_u32 v27, v29, 4, v27",
     f"    v_add_u32 v27, {VB:#x}, v27"] +
    [f"    v_xor_b32 v29, {u}, v28\n    v_lshl_add_u32 v{VA + u}, v29, 6, v27" for u in range(4)] +
    ["    v_bfe_u32 v27, v23, 1, 1", "    v_lshrrev_b32 v28, 1, v24", "    v_cmp_eq_u32 vcc, v27, v28",
     "    v_mov_b32 v29, 0x3f803f80", "    v_and_b32 v27, 1, v23",
     f"    v_cndmask_b32 v{SMA}, 0, v29, vcc",
     "    v_cmp_eq_u32 vcc, 1, v27",
     f"    v_mov_b32 v{SMA + 1}, v{SMA}", f"    v_mov_b32 v{SMA + 2}, v{SMA}", f"    v_mov_b32 v{SMA + 3}, v{SMA}",
     "    v_mov_b32 v28, 0x4444", "    v_mov_b32 v29, 0xeeee",
     f"    v_cndmask_b32 v{IDX}, v28, v29, vcc",
     f"    v_mov_b32 v{UMAX}, 0"] +
    [f"    v_mov_b32 v{L(0) + i}, 0" for i in range(8)]) + "\n"


def fallback(cfg):
    L_ = []
    A = L_.append
    FQ, FK, FS, FP, FV, FO = 32, 48, 80, 88, 92, 128
    M, LS, T0, T1 = 21, 22, 23, 24
    AK = 25
    AV = 124
    A(f"s_waitcnt vmcnt(0) lgkmcnt(0)")
    A(f"s_lshl_b32 s50, s{SW}, 13")
    for u in range(4):
        A(f"v_add_u32 v{AV + u}, s50, v{VA + u}")
    A(f"s_add_u32 s50, s50, {VB}")
    A(f"s_add_u32 s51, s50, 4096")
    A("s_mov_b32 s52, 0")
    A("Lfb_blk:")
    for ds in range(4):
        A(f"buffer_load_dwordx4 v[{FQ + 4 * ds}:{FQ + 4 * ds + 3}], v{VOQ}, {srd(SQ)}, s52 offen offset:{64 * ds}")
    A(f"v_mov_b32 v{M}, 0xff800000")
    for ds in range(4):
        A(f"v_mov_b32 v{AK + ds}, v{KA + ds}")
    A("s_mov_b32 s53, 0")
    A("s_waitcnt vmcnt(0)")
    A("Lfb_max:")
    for ds in range(4):
        A(f"ds_read_b128 v[{FK + 4 * ds}:{FK + 4 * ds + 3}], v{AK + ds}")
    for ds in range(4):
        A(f"v_add_u32 v{AK + ds}, 0x1000, v{AK + ds}")
    A("s_waitcnt lgkmcnt(0)")
    for ds in range(4):
        c = "0" if ds == 0 else f"v[{FS}:{FS + 3}]"
        A(f"v_mfma_f32_16x16x32_bf16 v[{FS}:{FS + 3}], v[{FK + 4 * ds}:{FK + 4 * ds + 3}], v[{FQ + 4 * ds}:{FQ + 4 * ds + 3}], {c}")
    A("s_nop 9")
    A(f"v_max3_f32 v{M}, v{M}, v{FS}, v{FS + 1}")
    A(f"v_max3_f32 v{M}, v{M}, v{FS + 2}, v{FS + 3}")
    A("s_add_u32 s53, s53, 1")
    A("s_cmp_lt_u32 s53, 32")
    A("s_cbranch_scc1 Lfb_max")

    def xred(reg, op):
        for sw in ("v_permlane16_swap_b32", "v_permlane32_swap_b32"):
            A(f"v_mov_b32 v{T0}, v{reg}")
            A("s_nop 2")
            A(f"{sw} v{reg}, v{T0}")
            A("s_nop 2")
            A(f"{op} v{reg}, v{reg}, v{T0}")
    xred(M, "v_max_f32")
    A(f"v_mul_f32 v{M}, s{SC}, v{M}")
    A(f"v_mov_b32 v{LS}, 0")
    for i in range(32):
        A(f"v_mov_b32 v{FO + i}, 0")
    for ds in range(4):
        A(f"v_mov_b32 v{AK + ds}, v{KA + ds}")
    A("s_mov_b32 s53, 0")
    A("Lfb_pv:")
    A("s_mov_b32 m0, s50")
    A("s_add_u32 s54, s53, 4096")
    for i in range(4):
        A(f"buffer_load_dwordx4 v{VOV}, {srd(SV)}, s53 offen offset:{1024 * i} lds")
    A("s_mov_b32 m0, s51")
    A("s_nop 0")
    for i in range(4):
        A(f"buffer_load_dwordx4 v{VOV}, {srd(SV)}, s54 offen offset:{1024 * i} lds")
    for kt in range(2):
        for ds in range(4):
            A(f"ds_read_b128 v[{FK + 16 * kt + 4 * ds}:{FK + 16 * kt + 4 * ds + 3}], v{AK + ds} offset:{4096 * kt}")
    for ds in range(4):
        A(f"v_add_u32 v{AK + ds}, 0x2000, v{AK + ds}")
    A("s_waitcnt lgkmcnt(0)")
    for kt in range(2):
        for ds in range(4):
            d = FS + 4 * kt
            c = "0" if ds == 0 else f"v[{d}:{d + 3}]"
            A(f"v_mfma_f32_16x16x32_bf16 v[{d}:{d + 3}], v[{FK + 16 * kt + 4 * ds}:{FK + 16 * kt + 4 * ds + 3}], v[{FQ + 4 * ds}:{FQ + 4 * ds + 3}], {c}")
    A("s_nop 9")
    for i in range(8):
        A(f"v_fma_f32 v{FS + i}, v{FS + i}, s{SC}, -v{M}")
    for i in range(8):
        A(f"v_exp_f32 v{FS + i}, v{FS + i}")
    A("s_nop 1")
    for i in range(8):
        A(f"v_add_f32 v{LS}, v{LS}, v{FS + i}")
    for i in range(4):
        A(f"v_cvt_pk_bf16_f32 v{FP + i}, v{FS + 2 * i}, v{FS + 2 * i + 1}")
    A("s_waitcnt vmcnt(0)")
    for db in range(8):
        for j in range(2):
            d = FV + 4 * db + 2 * j
            A(f"ds_read_b64_tr_b16 v[{d}:{d + 1}], v{AV + db // 2} offset:{j * 4096 + 8 * (db & 1)}")
    A("s_waitcnt lgkmcnt(0)")
    for db in range(8):
        d = FO + 4 * db
        A(f"v_mfma_f32_16x16x32_bf16 v[{d}:{d + 3}], v[{FV + 4 * db}:{FV + 4 * db + 3}], v[{FP}:{FP + 3}], v[{d}:{d + 3}]")
    A("s_add_u32 s53, s53, 8192")
    A("s_cmp_lt_u32 s53, 131072")
    A("s_cbranch_scc1 Lfb_pv")
    A("s_nop 9")
    xred(LS, "v_add_f32")
    A(f"v_rcp_f32 v{LS}, v{LS}")
    A("s_nop 1")
    for i in range(32):
        A(f"v_mul_f32 v{FO + i}, v{LS}, v{FO + i}")
    for uu in range(4):
        o = FO + 8 * uu
        for i in range(4):
            A(f"v_cvt_pk_bf16_f32 v{o + i}, v{o + 2 * i}, v{o + 2 * i + 1}")
        A(f"buffer_store_dwordx4 v[{o}:{o + 3}], v{VOQ}, {srd(SO)}, s52 offen offset:{64 * uu}")
    A("s_waitcnt vmcnt(0)")
    A("s_add_u32 s52, s52, 4096")
    A("s_cmp_lt_u32 s52, 49152")
    A("s_cbranch_scc1 Lfb_blk")
    return "\n".join("    " + x if not x.endswith(":") else x for x in L_) + "\n"


HEADER = """; Kernarg layout for this problem (48 bytes, ptrs only, base s[0:1]):
; @launch grid=(256,1,1) block=(256,1,1) lds=163840
.amdgcn_target "amdgcn-amd-amdhsa--gfx950"
.text
.globl {n}_kernel
.p2align 8
.type {n}_kernel,@function
{n}_kernel:
"""

FOOTER = """Lend:
    s_endpgm
.section .rodata,"a"
.p2align 6
.amdhsa_kernel {n}_kernel
  .amdhsa_next_free_vgpr 448
  .amdhsa_next_free_sgpr 102
  .amdhsa_accum_offset 256
  .amdhsa_group_segment_fixed_size 0
  .amdhsa_kernarg_size 48
  .amdhsa_user_sgpr_count 2
  .amdhsa_user_sgpr_kernarg_segment_ptr 1
  .amdhsa_system_sgpr_workgroup_id_x 1
.end_amdhsa_kernel
"""


def emit(cfg):
    prog, info = build(cfg)
    out = [HEADER.format(n=NAME)]
    if cfg.stamps:
        out.append(f"    s_memtime s[{STS}:{STS + 1}]\n    s_memrealtime s[92:93]\n")
    out.append(PROLOG)
    nfirst = next(i for i, x in enumerate(prog) if x.kind in ("valu", "wait", "raw"))
    out.append("".join("    " + x.text + "\n" for x in prog[:nfirst]))
    out.append(PROLOG2)
    out.append("".join("    " + x.text + "\n" for x in prog[nfirst:]))
    out.append(f"    s_mov_b32 s50, {0 if cfg.force_fallback else RANGE:#x}\n    s_nop 0\n"
               f"    v_cmp_le_u32 vcc, s50, v{UMAX}\n    s_nop 4\n    s_cbranch_vccz Ldone\n")
    out.append(fallback(cfg))
    out.append("Ldone:\n")
    if cfg.stamps:
        n = 13
        o = ["s_memtime s[86:87]", "s_waitcnt vmcnt(0)", "s_memtime s[88:89]", "s_memrealtime s[90:91]",
             "s_load_dwordx2 s[44:45], s[0:1], 40", "s_waitcnt lgkmcnt(0)",
             "s_mov_b32 s46, 0x100000", "s_mov_b32 s47, 0x20000",
             f"s_lshl_b32 s48, s2, 2", f"s_add_u32 s48, s48, s{SW}", "s_lshl_b32 s48, s48, 6", "v_mov_b32 v1, s48"]
        for i in range(15):
            o += [f"v_mov_b32 v2, s{STS + 2 * i}", f"buffer_store_dword v2, v1, s[44:47], 0 offen offset:{4 * i}", "s_nop 1"]
        out.append("".join("    " + x + "\n" for x in o))
    out.append(FOOTER.format(n=NAME))
    return "".join(out), info


if __name__ == "__main__":
    cfg = Cfg()
    path = f"cdna_kernels/{NAME}.s"
    for arg in sys.argv[1:]:
        if arg.startswith("-o"):
            path = arg[2:]
        else:
            k, _, val = arg.partition("=")
            cur = getattr(cfg, k)
            setattr(cfg, k, (val != "0") if isinstance(cur, bool) else (int(val) if isinstance(cur, int) else " " + val.replace("+", " ")))
    txt, info = emit(cfg)
    open(path, "w").write(txt)
    print(path, info, "bytes", len(txt))
```
